```python
import torch

def _softmax(x, axis=-1):
    return torch.softmax(x, dim=axis)
def _gelu(x):
    return torch.nn.functional.gelu(x, approximate="tanh")
def _silu(x):
    return torch.nn.functional.silu(x)
def _sigmoid(x):
    return torch.sigmoid(x)
def _layernorm(x, axis=-1, eps=1e-5):
    m = x.mean(dim=axis, keepdim=True)
    v = x.var(dim=axis, keepdim=True, unbiased=False)
    return (x - m) / torch.sqrt(v + eps)
def _scatter_add(tgt, idx, src, axis=0):
    return tgt.clone().index_add_(axis, idx, src)
def _segment_sum(src, seg, n):
    out = torch.zeros((n,) + src.shape[1:], dtype=src.dtype)
    return out.index_add_(0, seg, src)
def _pad(x, pw):
    flat = tuple(v for pair in reversed(pw) for v in pair)
    return torch.nn.functional.pad(x, flat)

kernel_name = 'recurrent_scan__ssm_conv_s4__dense_activation_mish__prompt'

def setup_inputs():

    _w = (lambda a: (lambda t: t.to(torch.bfloat16) if t.is_floating_point() else t)(torch.as_tensor(a)))
    def _A_setup():
        B, L, D, N = 1, 2048, 640, 128
        A_re = -(lambda _x: torch.exp(torch.as_tensor(_x)))((lambda *s: torch.randn(*s, dtype=torch.bfloat16) * 3.2)(D, N))
        A_im = torch.pi * (lambda *s: torch.randn(*s, dtype=torch.bfloat16) * 0.2)(D, N)
        B_re = (lambda *s: torch.randn(*s, dtype=torch.bfloat16) * 0.2)(D, N)
        B_im = (lambda *s: torch.randn(*s, dtype=torch.bfloat16) * 0.2)(D, N)
        C_re = (lambda *s: torch.randn(*s, dtype=torch.bfloat16) * 0.2)(D, N)
        C_im = (lambda *s: torch.randn(*s, dtype=torch.bfloat16) * 0.2)(D, N)
        log_dt = (lambda *s: torch.randn(*s, dtype=torch.bfloat16) * 0.2)(D) * 0.5 - 4.0
        Dskip = (lambda *s: torch.randn(*s, dtype=torch.bfloat16) * 0.2)(D)
        return {
            "u": _w((lambda *s: torch.randn(*s, dtype=torch.bfloat16) * 0.05)(B, L, D)),
            "A_re": _w(A_re),
            "A_im": _w(A_im),
            "B_re": _w(B_re),
            "B_im": _w(B_im),
            "C_re": _w(C_re),
            "C_im": _w(C_im),
            "log_dt": _w(log_dt),
            "Dskip": _w(Dskip),
        }
    _A_in = _A_setup()

    def _B_setup():
        B, S, D, F = 1, 2048, 640, 1728
        return {
            "x": _w((lambda *s: torch.randn(*s, dtype=torch.bfloat16) * 0.05)(B, S, D)),
            "w1": _w((lambda *s: torch.randn(*s, dtype=torch.bfloat16) * 0.8)(D, F) * (D ** -0.5)),
            "b1": _w((lambda *s: torch.randn(*s, dtype=torch.bfloat16) * 0.4)(F)),
            "w2": _w((lambda *s: torch.randn(*s, dtype=torch.bfloat16) * 0.1)(F, D) * (F ** -0.5)),
        }
    _B_in = _B_setup()

    return {
        "A_u": _A_in["u"],
        "A_A_re": _A_in["A_re"],
        "A_A_im": _A_in["A_im"],
        "A_B_re": _A_in["B_re"],
        "A_B_im": _A_in["B_im"],
        "A_C_re": _A_in["C_re"],
        "A_C_im": _A_in["C_im"],
        "A_log_dt": _A_in["log_dt"],
        "A_Dskip": _A_in["Dskip"],
        "B_x": _B_in["x"],
        "B_w1": _B_in["w1"],
        "B_b1": _B_in["b1"],
        "B_w2": _B_in["w2"],
    }

def reference(A_u, A_A_re, A_A_im, A_B_re, A_B_im, A_C_re, A_C_im, A_log_dt, A_Dskip, B_x, B_w1, B_b1, B_w2):
    def _A_ref(u, A_re, A_im, B_re, B_im, C_re, C_im, log_dt, Dskip):
        Bsz, L, D = u.shape
        dt = torch.exp(log_dt)[:, None]
        A = A_re + 1j * A_im
        Bc = B_re + 1j * B_im
        Cc = C_re + 1j * C_im
        logdA = dt * A
        dB = dt * Bc
        l = (lambda x, dt: x.to(dt))(torch.arange(L), A_re.dtype)
        P = torch.exp(logdA[:, :, None] * l[None, None, :])
        K = torch.einsum("dn,dnl,dn->dl", Cc, P, dB).real
        L2 = 2 * L
        Kp = _pad(K, ((0, 0), (0, L)))
        up = (lambda x, *d: x.permute(*d))(u, 0, 2, 1)
        up = _pad(up, ((0, 0), (0, 0), (0, L)))
        Kf = (lambda x, axes=(-2,-1): torch.fft.rfft2(x.float(), dim=axes))(Kp[:, None, :], axes=(-2, -1))
        Uf = (lambda x, axes=(-2,-1): torch.fft.rfft2(x.float(), dim=axes))(up[:, :, None, :], axes=(-2, -1))
        Yf = Uf * Kf[None, :, :, :]
        y = (lambda x, s, axes=(-2,-1): torch.fft.irfft2(x, s=s, dim=axes).to(torch.bfloat16))(Yf, (1, L2), axes=(-2, -1))[:, :, 0, :L]
        y = (lambda x, *d: x.permute(*d))(y, 0, 2, 1) + u * Dskip[None, None, :]
        return y

    def _B_ref(x, w1, b1, w2):
        h = torch.einsum("bsd,df->bsf", x, w1) + b1
        sp = torch.log1p(torch.exp(-torch.abs(h))) + torch.where(h > 0, h, torch.zeros_like(h))
        act = h * torch.tanh(sp)
        return torch.einsum("bsf,fd->bsd", act, w2)

    x = A_u
    xn = _layernorm(x, axis=-1)
    s = _A_ref(xn, A_A_re, A_A_im, A_B_re, A_B_im, A_C_re, A_C_im, A_log_dt, A_Dskip)
    g = _silu(_B_ref(xn, B_w1, B_b1, B_w2))
    return x + s * g
```

```python
import re

TRANS = ("v_exp_f32", "v_log_f32", "v_rcp_f32", "v_rsq_f32", "v_sqrt_f32", "v_sin_f32", "v_cos_f32")


def _regs(tok):
    tok = tok.strip()
    tok = tok.lstrip("-")
    m = re.match(r"^abs\((.*)\)$", tok) or re.match(r"^\|(.*)\|$", tok)
    if m:
        tok = m.group(1)
    m = re.match(r"^([vsa])(\d+)$", tok)
    if m:
        return [(m.group(1), int(m.group(2)))]
    m = re.match(r"^([vsa])\[(\d+):(\d+)\]$", tok)
    if m:
        return [(m.group(1), i) for i in range(int(m.group(2)), int(m.group(3)) + 1)]
    if tok == "vcc":
        return [("x", "vcc")]
    if tok == "exec":
        return [("x", "exec")]
    if tok == "m0":
        return [("x", "m0")]
    return []


def _split_ops(rest):
    out, depth, cur = [], 0, ""
    for ch in rest:
        if ch in "[(":
            depth += 1
        if ch in "])":
            depth -= 1
        if ch == "," and depth == 0:
            out.append(cur)
            cur = ""
        else:
            cur += ch
    out.append(cur)
    res = []
    for i, o in enumerate(out):
        o = o.strip()
        parts = o.split()
        res.append(parts[0] if parts else "")
    return res


class Asm:
    def __init__(self):
        self.lines = []
        self.vmq = []
        self.lgq = []
        self.n = 0
        self.lastw = {}
        self.mfma_c = {}
        self.store_rd = {}
        self.nops = 0

    def raw(self, s):
        self.lines.append(s)

    def label(self, name):
        self.lines.append(name + ":")
        self.barrier_hazards()

    def barrier_hazards(self):
        need = 0
        for r, (slot, kind, p) in self.lastw.items():
            d = self.n - slot
            req = {"mfma": {2: 5, 4: 8, 8: 12, 16: 20}.get(p, 20), "valu": 2, "trans": 2, "dot": 3, "vsgpr": 5}.get(kind, 0)
            need = max(need, req - d)
        for r, (slot, p) in self.mfma_c.items():
            need = max(need, {2: 1, 4: 3, 8: 7, 16: 15}[p] - (self.n - slot))
        for r, slot in self.store_rd.items():
            need = max(need, 2 - (self.n - slot))
        self._nop(need)
        self.lastw.clear()
        self.mfma_c.clear()
        self.store_rd.clear()

    def _nop(self, k):
        while k > 0:
            c = min(k, 16)
            self.lines.append(f"  s_nop {c-1}")
            self.n += c
            self.nops += c
            k -= c

    def comment(self, s):
        self.lines.append("  ; " + s)

    def __call__(self, s):
        s = s.strip()
        if not s:
            return
        if "\n" in s:
            for l in s.split("\n"):
                self(l)
            return
        if s.startswith(";"):
            self.lines.append("  " + s)
            return
        code = s.split(";")[0].strip()
        parts = code.split(None, 1)
        op = parts[0]
        ops = _split_ops(parts[1]) if len(parts) > 1 else []
        regs = [_regs(o) for o in ops]
        is_mfma = op.startswith("v_mfma")
        is_valu = op.startswith("v_") and not is_mfma
        is_vmem = op.startswith("buffer_") or op.startswith("global_")
        is_ds = op.startswith("ds_")
        is_salu = op.startswith("s_")
        dst, src = [], []
        if is_mfma:
            dst, src = regs[0], regs[1] + regs[2] + regs[3]
        elif is_valu:
            if op.startswith("v_cmp"):
                dst, src = regs[0], sum(regs[1:], [])
            elif op.startswith("v_permlane") and "swap" in op:
                dst, src = regs[0] + regs[1], regs[0] + regs[1]
            elif op.startswith("v_readfirstlane") or op.startswith("v_readlane"):
                dst, src = regs[0], sum(regs[1:], [])
            elif op in ("v_fmac_f32", "v_dot2c_f32_bf16", "v_writelane_b32") or op.startswith("v_fmac") or "_d16" in op:
                dst, src = regs[0], sum(regs, [])
            elif op.startswith("v_add_co") or op.startswith("v_addc_co") or op.startswith("v_sub_co"):
                dst, src = regs[0] + regs[1], sum(regs[2:], [])
            else:
                dst, src = regs[0], sum(regs[1:], [])
                if "_dpp" in op or " row_" in code or "quad_perm" in code or "wave_" in code:
                    src = src + regs[0]
        elif is_vmem:
            if "store" in op or ("atomic" in op and " sc0" not in code) or code.rstrip().endswith(" lds") or " lds " in code or op.startswith("global_load_lds"):
                dst, src = [], sum(regs, [])
            elif op in ("buffer_wbl2", "buffer_inv"):
                dst, src = [], []
            else:
                dst, src = regs[0], sum(regs[1:], [])
                if "atomic" in op:
                    src = src + regs[0]
        elif is_ds:
            if op.startswith("ds_write") or op.startswith("ds_add"):
                dst, src = [], sum(regs, [])
            else:
                dst, src = regs[0], sum(regs[1:], [])
                if "d16" in op:
                    src = src + regs[0]
        elif is_salu:
            if op.startswith("s_cmp") or op.startswith("s_cbranch") or op in ("s_branch", "s_barrier", "s_waitcnt", "s_nop", "s_endpgm", "s_sleep", "s_setprio"):
                dst, src = [], sum(regs, [])
            else:
                dst, src = (regs[0] if regs else []), sum(regs[1:], [])
        is_dpp = is_valu and ("_dpp" in op or " row_" in code or "quad_perm" in code or "wave_" in code)
        is_trans = op in TRANS
        is_dot = op.startswith("v_dot2")
        is_lane = op.startswith("v_readfirstlane") or op.startswith("v_readlane")
        is_perml = op.startswith("v_permlane")
        passes = 0
        if is_mfma:
            passes = 8 if "32x32x16" in op else (4 if "16x16x32" in op else 16)
        need = 0
        mf_tab = {2: 5, 4: 8, 8: 12, 16: 20}
        for r in src:
            if r not in self.lastw:
                continue
            slot, kind, p = self.lastw[r]
            d = self.n - slot - 1
            req = 0
            if kind == "mfma":
                if is_mfma:
                    cregs = regs[3]
                    if r in cregs and r not in regs[1] + regs[2]:
                        same = (cregs == regs[0]) and self._mfma_dst.get(r) == tuple(cregs) and p == passes
                        req = (2 if p == 2 else 0) if same else {2: 4, 4: 6, 8: 10, 16: 18}[p]
                    else:
                        req = mf_tab[p]
                else:
                    req = mf_tab[p]
            elif kind in ("valu", "trans", "dot"):
                if is_mfma:
                    req = 2
                if is_dpp or is_perml:
                    req = max(req, 2)
                if is_lane:
                    req = max(req, 1)
                if kind == "trans" and not is_trans:
                    req = max(req, 1)
                if kind == "trans" and (is_vmem or is_ds):
                    req = max(req, 1)
                if kind == "dot":
                    if is_dot and r in (regs[3] if len(regs) > 3 else regs[0]) and r not in regs[1] + regs[2]:
                        pass
                    else:
                        req = max(req, 3)
            elif kind == "vsgpr":
                if is_vmem:
                    req = 5
                elif is_valu:
                    req = 4 if is_lane else 2
                elif is_salu:
                    req = 1
            elif kind == "sm0":
                req = 1
            need = max(need, req - d)
        if (is_vmem and (" lds" in code or op.startswith("global_load_lds"))) and ("x", "m0") in self.lastw:
            need = max(need, 1 - (self.n - self.lastw[("x", "m0")][0] - 1))
        for r in dst:
            if r in self.lastw:
                slot, kind, p = self.lastw[r]
                d = self.n - slot - 1
                if kind == "mfma" and not is_mfma:
                    need = max(need, mf_tab[p] - d)
                if kind == "mfma" and is_mfma and r not in (regs[3]):
                    need = max(need, mf_tab[p] - d)
                if kind == "dot" and not is_dot:
                    need = max(need, 3 - d)
            if r in self.mfma_c and (is_valu or is_ds or is_vmem):
                slot, p = self.mfma_c[r]
                need = max(need, {2: 1, 4: 3, 8: 7, 16: 15}[p] - (self.n - slot - 1))
            if r in self.store_rd:
                need = max(need, 2 - (self.n - self.store_rd[r] - 1))
        self._nop(need)
        self.lines.append("  " + s)
        slot = self.n
        if op == "s_nop":
            self.n += int(ops[0]) + 1
        else:
            self.n += 1
        if not hasattr(self, "_mfma_dst"):
            self._mfma_dst = {}
        for r in dst:
            if is_mfma:
                self.lastw[r] = (slot, "mfma", passes)
                self._mfma_dst[r] = tuple(regs[0])
            elif is_valu:
                if r[0] in ("s", "x"):
                    self.lastw[r] = (slot, "vsgpr", 0)
                else:
                    self.lastw[r] = (slot, "trans" if is_trans else ("dot" if is_dot else "valu"), 0)
            elif is_salu and r == ("x", "m0"):
                self.lastw[r] = (slot, "sm0", 0)
            else:
                self.lastw.pop(r, None)
        if is_mfma:
            for r in regs[3]:
                self.mfma_c[r] = (slot, passes)
        if is_vmem and "store" in op and ("x4" in op or "x3" in op):
            data = regs[0] if op.startswith("buffer_") else regs[1]
            for r in data:
                self.store_rd[r] = slot

    _mfma_dst = {}

    def vm(self, s, tag=None):
        self(s)
        self.vmq.append(tag)
        assert len(self.vmq) <= 63, "vmcnt overflow"

    def lg(self, s, tag=None):
        self(s)
        self.lgq.append(tag)

    def wait_vm(self, tag=None):
        if tag is None:
            n = 0
        else:
            idx = [i for i, t in enumerate(self.vmq) if t == tag]
            if not idx:
                return
            n = len(self.vmq) - idx[-1] - 1
        self(f"s_waitcnt vmcnt({n})")
        self.vmq = self.vmq[len(self.vmq) - n:] if n else []

    def wait_lg(self, tag=None):
        if tag is None:
            n = 0
        else:
            idx = [i for i, t in enumerate(self.lgq) if t == tag]
            if not idx:
                return
            n = len(self.lgq) - idx[-1] - 1
        if n > 15:
            n = 15
        self(f"s_waitcnt lgkmcnt({n})")
        self.lgq = self.lgq[len(self.lgq) - n:] if n else []

    def text(self):
        return "\n".join(self.lines) + "\n"


def vr(a, n=1):
    return f"v{a}" if n == 1 else f"v[{a}:{a+n-1}]"


def sr(a, n=1):
    return f"s{a}" if n == 1 else f"s[{a}:{a+n-1}]"
```

```python
from asmlib import Asm, vr, sr
from gen import *


def csq(a, Z, T):
    a(f"v_pk_mul_f32 {vr(T,2)}, {vr(Z,2)}, {vr(Z,2)} op_sel:[0,0] op_sel_hi:[0,1]")
    return f"v_pk_fma_f32 {vr(Z,2)}, {vr(Z,2)}, {vr(Z,2)}, {vr(T,2)} op_sel:[1,1,0] op_sel_hi:[0,1,1] neg_lo:[1,0,0]"


def cmul1(D, C, G):
    return f"v_pk_mul_f32 {vr(D,2)}, {vr(C,2)}, {vr(G,2)} op_sel:[0,0] op_sel_hi:[0,1]"


def cmul2(D, C, G):
    return f"v_pk_fma_f32 {vr(D,2)}, {vr(C,2)}, {vr(G,2)}, {vr(D,2)} op_sel:[1,1,0] op_sel_hi:[1,0,1] neg_lo:[1,0,0]"


def role_kgen(a):
    AB, CC, CT = 0, 1024, 5120
    a(f"s_load_dwordx16 s[4:19], s[0:1], {KA['Are']}")
    a(f"s_load_dwordx2 s[20:21], s[0:1], {KA['ws']}")
    a("v_and_b32 v1, 63, v0")
    a("v_lshrrev_b32 v2, 6, v0")
    a("v_readfirstlane_b32 s3, v2")
    a("v_lshlrev_b32 v3, 2, v1")
    a("v_lshlrev_b32 v4, 13, v2")
    a("s_lshl_b32 s2, s2, 2")
    a("s_add_u32 s2, s2, s3")
    a("s_lshl_b32 s22, s2, 8")
    a("s_lshl_b32 s23, s2, 1")
    a("v_mov_b32 v5, 0")
    a("s_waitcnt lgkmcnt(0)")
    for k in range(6):
        srd(a, 24 + 4 * k, 4 + 2 * k, 640 * 256)
    srd(a, 48, 16, 1280)
    srd(a, 52, 20, SZ_KR, WS_KR)
    srd(a, 56, 20, SZ_KS, WS_KS)
    a.vm("buffer_load_ushort v16, v5, s[48:51], s23 offen")
    for k in range(6):
        a.vm(f"buffer_load_dword v{10+k}, v3, {sr(24+4*k,4)}, s22 offen")
    a.wait_vm()
    a("v_lshlrev_b32 v16, 16, v16")
    a("v_mul_f32 v16, 0x3fb8aa3b, v16")
    a("v_exp_f32 v16, v16")
    a("v_cvt_pk_bf16_f32 v16, v16, v16")
    a("v_lshlrev_b32 v16, 16, v16")
    for k in range(6):
        a(f"v_lshlrev_b32 v{20+k}, 16, v{10+k}")
        a(f"v_and_b32 v{26+k}, 0xffff0000, v{10+k}")
    for m in range(2):
        b = 20 + 6 * m
        a(f"v_mul_f32 v{32+2*m}, v16, v{b}")
        a(f"v_mul_f32 v{33+2*m}, v16, v{b+1}")
        a(f"v_mul_f32 v{32+2*m}, 0x3fb8aa3b, v{32+2*m}")
        a(f"v_mul_f32 v{33+2*m}, 0x3e22f983, v{33+2*m}")
        a(f"v_mul_f32 v{b+2}, v16, v{b+2}")
        a(f"v_mul_f32 v{b+3}, v16, v{b+3}")
        c = 40 + 8 * m
        a(f"v_mul_f32 v{c}, v{b+4}, v{b+2}")
        a(f"v_mul_f32 v{c+1}, v{b+4}, v{b+3}")
        a(f"v_fma_f32 v{c}, -v{b+5}, v{b+3}, v{c}")
        a(f"v_fma_f32 v{c+1}, v{b+5}, v{b+2}, v{c+1}")
    a("v_max_f32 v17, |v40|, |v41|")
    a("v_max3_f32 v17, |v48|, |v49|, v17")
    for ctl in ("quad_perm:[1,0,3,2]", "quad_perm:[2,3,0,1]", "row_half_mirror", "row_mirror"):
        a(f"v_max_f32_dpp v17, v17, v17 {ctl} row_mask:0xf bank_mask:0xf")
    for k in range(4):
        a(f"v_readlane_b32 s{60+k}, v17, {16*k}")
    a("s_max_u32 s60, s60, s61")
    a("s_max_u32 s62, s62, s63")
    a("s_max_u32 s60, s60, s62")
    a("s_lshr_b32 s60, s60, 23")
    a("s_max_u32 s60, s60, 7")
    a("s_min_u32 s60, s60, 254")
    a("s_sub_u32 s61, 260, s60")
    a("s_lshl_b32 s61, s61, 23")
    a("s_sub_u32 s62, s60, 6")
    a("s_lshl_b32 s62, s62, 23")
    for m in range(2):
        c = 40 + 8 * m
        a(f"v_mul_f32 v{c}, s61, v{c}")
        a(f"v_mul_f32 v{c+1}, s61, v{c+1}")
    for li, L in enumerate((0x43800000, 0x44000000, 0x44c00000)):
        for m in range(2):
            t = 60 + 8 * m
            a(f"v_mul_f32 v{t}, {hex(L)}, v{32+2*m}")
            a(f"v_mul_f32 v{t+1}, {hex(L)}, v{33+2*m}")
            a(f"v_exp_f32 v{t}, v{t}")
            a(f"v_fract_f32 v{t+1}, v{t+1}")
            a(f"v_cos_f32 v{t+2}, v{t+1}")
            a(f"v_sin_f32 v{t+3}, v{t+1}")
            a(f"v_pk_mul_f32 {vr(t+2,2)}, {vr(t+2,2)}, {vr(t,2)} op_sel:[0,0] op_sel_hi:[1,0]")
            c = 40 + 8 * m
            d = c + 2 + 2 * li
            a(cmul1(d, c, t + 2))
            a(cmul2(d, c, t + 2))
    a("v_lshl_add_u32 v6, v1, 4, v4")
    a("v_lshl_add_u32 v7, v1, 6, v4")
    a.lg(f"ds_write_b128 v6, v[32:35] offset:{AB}")
    for k in range(4):
        a.lg(f"ds_write_b128 v7, {vr(40+4*k,4)} offset:{CC+16*k}")
    a("v_mov_b32 v8, s62")
    a("s_lshl_b32 s23, s2, 2")
    a.vm("buffer_store_dword v8, v5, s[56:59], s23 offen")
    a("v_and_b32 v8, 15, v1")
    a("v_lshrrev_b32 v9, 4, v1")
    a("v_cvt_f32_u32 v10, v8")
    a("v_mov_b32 v11, v10")
    a("v_lshl_add_u32 v12, v9, 5, v4")
    a("v_lshl_add_u32 v13, v9, 7, v4")
    ABR = [16, 24]
    CCR = [32, 64]
    ZR, TR = 96, 104
    ER = 112
    FR = 120
    DT = 168

    def rd(s):
        b = s & 1
        for k in range(2):
            a.lg(f"ds_read_b128 {vr(ABR[b]+4*k,4)}, v12 offset:{AB + 128*s + 16*k}", ("ab", s))
        for k in range(8):
            a.lg(f"ds_read_b128 {vr(CCR[b]+4*k,4)}, v13 offset:{CC + 512*s + 16*k}", ("cc", s))

    rd(0)
    for s in range(8):
        b = s & 1
        F = FR + 24 * b
        if s + 1 < 8:
            rd(s + 1)
        a.wait_lg(("ab", s))
        R = range(4)
        for i in R:
            a(f"v_pk_mul_f32 {vr(TR+2*i,2)}, {vr(ABR[b]+2*i,2)}, v[10:11]")
        for i in R:
            a(f"v_exp_f32 v{TR+2*i}, v{TR+2*i}")
        for i in R:
            a(f"v_fract_f32 v{TR+2*i+1}, v{TR+2*i+1}")
        for i in R:
            a(f"v_cos_f32 v{ZR+2*i}, v{TR+2*i+1}")
        for i in R:
            a(f"v_sin_f32 v{ZR+2*i+1}, v{TR+2*i+1}")
        for i in R:
            a(f"v_pk_mul_f32 {vr(ZR+2*i,2)}, {vr(ZR+2*i,2)}, {vr(TR+2*i,2)} op_sel:[0,0] op_sel_hi:[1,0]")
        for i in R:
            a(f"v_cvt_pk_f16_f32 v{F+i}, v{ZR+2*i}, v{ZR+2*i+1}")

        def sq2():
            for _ in range(2):
                seconds = [csq(a, ZR + 2 * i, TR + 2 * i) for i in R]
                for x in seconds:
                    a(x)
        sq2()
        for i in R:
            a(f"v_cvt_pk_f16_f32 v{F+4+i}, v{ZR+2*i}, v{ZR+2*i+1}")
        sq2()
        a.wait_lg(("cc", s))

        def emul(e):
            for i in R:
                a(cmul1(ER + 2 * i, CCR[b] + 8 * i + 2 * e, ZR + 2 * i))
            for i in R:
                a(cmul2(ER + 2 * i, CCR[b] + 8 * i + 2 * e, ZR + 2 * i))
            for i in R:
                a(f"v_cvt_pk_f16_f32 v{F+8+4*e+i}, v{ER+2*i}, -v{ER+2*i+1}")
        emul(0)
        emul(1)
        sq2()
        for t in range(2):
            c = "0" if s == 0 else vr(DT + 4 * t, 4)
            a(f"v_mfma_f32_16x16x32_f16 {vr(DT+4*t,4)}, {vr(F,4)}, {vr(F+8+4*t,4)}, {c}")
        emul(2)
        emul(3)
        for t in range(2, 4):
            c = "0" if s == 0 else vr(DT + 4 * t, 4)
            a(f"v_mfma_f32_16x16x32_f16 {vr(DT+4*t,4)}, {vr(F+4,4)}, {vr(F+8+4*t,4)}, {c}")
    a("v_lshl_add_u32 v14, v8, 5, v4")
    a("v_lshl_add_u32 v14, v9, 3, v14")
    for t in range(4):
        a(f"v_cvt_pk_f16_f32 v{16+2*t}, v{DT+4*t}, v{DT+4*t+1}")
        a(f"v_cvt_pk_f16_f32 v{17+2*t}, v{DT+4*t+2}, v{DT+4*t+3}")
        a.lg(f"ds_write_b64 v14, {vr(16+2*t,2)} offset:{CT+512*t}")
    a("v_sub_u32 v15, 127, v1")
    a("v_lshl_add_u32 v15, v15, 2, v4")
    a(f"v_add_u32 v15, {CT+768}, v15")
    a("v_sub_u32 v16, 63, v1")
    a("v_lshl_add_u32 v16, v16, 4, v4")
    for it in range(3):
        k = 2 - it
        a.lg(f"ds_read2_b32 {vr(20+2*it,2)}, v15 offset0:{64*k} offset1:{64*k+1}", ("e", it))
    a.lg(f"ds_read_b128 v[28:31], v16 offset:{CT}")
    a.lg(f"ds_read_b32 v32, v16 offset:{CT+16}", ("e", 3))
    a("s_mov_b32 s63, 0x01000100")
    a("s_mov_b32 s64, 0x03020302")
    a("s_mov_b32 s65, 0x01000302")
    a("v_and_b32 v17, 1, v1")
    a("v_cmp_eq_u32 s[66:67], 1, v17")
    a("v_mov_b32 v18, 0x05040504")
    a("v_mov_b32 v19, 0x01000504")
    a("v_cndmask_b32 v17, v18, v19, s[66:67]")
    a("v_cmp_le_u32 s[66:67], 32, v1")
    a("v_mov_b32 v33, 0x01000302")
    a("v_mov_b32 v34, 0x01000100")
    a("v_cndmask_b32 v18, v19, v33, s[66:67]")
    a("v_cndmask_b32 v19, v34, v33, s[66:67]")
    a("v_lshlrev_b32 v35, 4, v1")
    a(f"s_mul_i32 s22, s2, {KR_PITCH}")
    for it in range(4):
        o = 40 + 4 * it
        a.wait_lg(("e", it))
        if it < 2:
            d0, d1 = 20 + 2 * it, 21 + 2 * it
            a(f"v_perm_b32 v{o}, v{d1}, v{d1}, s63")
            a(f"v_perm_b32 v{o+1}, v{d1}, v{d0}, v17")
            a(f"v_perm_b32 v{o+2}, v{d0}, v{d0}, s63")
            a(f"v_mov_b32 v{o+3}, v{o+2}")
        elif it == 2:
            d0, d1 = 24, 25
            a(f"v_perm_b32 v{o}, v{d1}, v{d1}, s63")
            a(f"v_perm_b32 v{o+1}, v{d0}, v{d0}, s64")
            a(f"v_perm_b32 v{o+2}, v{d0}, v{d0}, s65")
            a(f"v_perm_b32 v{o+3}, v{d0}, v{d0}, s63")
        else:
            a(f"v_perm_b32 v{o}, v32, v31, v18")
            a(f"v_perm_b32 v{o+1}, v30, v30, v19")
            a(f"v_perm_b32 v{o+2}, v30, v29, v18")
            a(f"v_perm_b32 v{o+3}, v28, v28, v19")
        a.vm(f"buffer_store_dwordx4 {vr(o,4)}, v35, s[52:55], s22 offen offset:{1024*it}")
    for k in range(4):
        a(f"v_mov_b32 v{56+k}, 0")
    a("s_add_u32 s22, s22, 4096")
    a.vm("buffer_store_dwordx4 v[56:59], v5, s[52:55], s22 offen")
    a("s_endpgm")


def role_conv(a):
    CS = 4160
    UB = 34896
    PP, PW = 1088, 8704
    a(f"s_load_dwordx2 s[4:5], s[0:1], {KA['ws']}")
    a(f"s_load_dwordx2 s[6:7], s[0:1], {KA['Dskip']}")
    a("v_and_b32 v1, 63, v0")
    a("v_lshrrev_b32 v2, 6, v0")
    a("v_lshlrev_b32 v3, 4, v0")
    a("v_lshrrev_b32 v4, 2, v0")
    a("v_and_b32 v5, 3, v0")
    a("v_mul_u32_u24 v6, 40960, v4")
    a("v_lshl_add_u32 v6, v5, 4, v6")
    a(f"s_mul_i32 s3, s2, {KR_PITCH}")
    a("s_lshl_b32 s28, s2, 6")
    a("s_lshl_b32 s29, s2, 2")
    a("s_lshl_b32 s30, s2, 1")
    a("s_lshl_b32 s31, s2, 12")
    a("v_mov_b32 v7, 0")
    a("s_waitcnt lgkmcnt(0)")
    srd(a, 8, 4, SZ_KR, WS_KR)
    srd(a, 12, 4, SZ_UT, WS_UT)
    srd(a, 16, 4, SZ_KS, WS_KS)
    srd(a, 20, 6, 1280)
    srd(a, 24, 4, SZ_ST, WS_ST)
    D = 16
    a.vm(f"buffer_load_dwordx4 {vr(D,4)}, v3, s[8:11], s3 offen", "k")
    a.vm(f"buffer_load_dwordx4 {vr(D+4,4)}, v3, s[8:11], s3 offen offset:16", "k")
    a.vm("buffer_load_dwordx4 v[48:51], v6, s[12:15], s28 offen", "u")
    a.vm("buffer_load_dword v120, v7, s[16:19], s29 offen", "c")
    a.vm("buffer_load_ushort v121, v7, s[20:23], s30 offen", "c")
    for k in range(4):
        a(f"v_mov_b32 v{52+k}, 0")
    a("v_min_u32 v8, 2, v5")
    a("v_and_b32 v9, 7, v4")
    a(f"v_mul_u32_u24 v9, {CS}, v9")
    a("v_lshl_add_u32 v8, v8, 4, v9")
    a.lg("ds_write_b128 v8, v[52:55]")
    a("v_lshlrev_b32 v8, 4, v5")
    a.lg(f"ds_write_b128 v8, v[52:55] offset:{UB-80}")
    a("v_mul_u32_u24 v9, 80, v4")
    a("v_add_u32 v9, v9, v8")
    a("v_sub_u32 v10, 258, v0")
    a("v_lshlrev_b32 v10, 4, v10")
    D2, XA, XBk = 24, 32, 40
    a.wait_vm("k")
    for k in range(6):
        a(f"v_mov_b32 v{D2+k}, v{D+1+k}")
    for k in range(7):
        a(f"v_alignbyte_b32 v{XA+k}, v{D+k+1}, v{D+k}, 2")
    for k in range(6):
        a(f"v_alignbyte_b32 v{XBk+k}, v{D+k+2}, v{D+k+1}, 2")
    for s in range(8):
        o = 7 - s
        if o % 2 == 0:
            k = o // 2
            r = D + k if k % 2 == 0 else D2 + k - 1
        else:
            k = (o - 1) // 2
            r = XA + k if k % 2 == 0 else XBk + k - 1
        a.lg(f"ds_write_b128 v10, {vr(r,4)} offset:{s*CS}")
    a.wait_vm("u")
    a.lg(f"ds_write_b128 v9, v[48:51] offset:{UB}")
    vA, vG1, vG0 = 11, 12, 56
    a("v_and_b32 v3, 31, v1")
    a("v_lshrrev_b32 v4, 5, v1")
    a("v_and_b32 v5, 7, v3")
    a(f"v_mul_u32_u24 v{vA}, {CS}, v5")
    a("v_lshrrev_b32 v5, 3, v3")
    a("v_sub_u32 v5, v5, v4")
    a("v_add_u32 v5, 1, v5")
    a(f"v_lshl_add_u32 v{vA}, v5, 4, v{vA}")
    a(f"v_lshl_add_u32 v{vA}, v2, 9, v{vA}")
    a("v_lshlrev_b32 v5, 3, v2")
    a("v_sub_u32 v5, v3, v5")
    a("v_mul_i32_i24 v5, 80, v5")
    a("v_lshl_add_u32 v5, v4, 4, v5")
    a(f"v_add_u32 v{vG1}, {UB + 25*80}, v5")
    a("v_lshlrev_b32 v6, 4, v4")
    a(f"v_add_u32 v6, {UB-80}, v6")
    for dl in range(8):
        a(f"v_add_u32 v{vG0+dl}, {UB - 80*dl}, v5")
        a(f"v_max_i32 v{vG0+dl}, v{vG0+dl}, v6")
    a.wait_lg()
    a("s_barrier")
    ACC0, ACC1 = 64, 80
    FB = 16
    sets = [16, 32, 96]
    its = [(dl, k0) for dl in range(8) for k0 in (0, 16)]

    def rd(n):
        dl, k0 = its[n]
        f = sets[n % 3]
        off = 64 * dl + 32 - 2 * k0
        a.lg(f"ds_read_b128 {vr(f,4)}, v{vA} offset:{off}")
        a.lg(f"ds_read_b128 {vr(f+4,4)}, v{vG0+dl} offset:{2*k0}", ("a", n))
        a.lg(f"ds_read_b128 {vr(f+8,4)}, v{vG1} offset:{(7-dl)*80 + 2*k0}", ("b", n))
        a.lg(f"ds_read_b128 {vr(f+12,4)}, v{vA} offset:{off+2048}", ("c", n))
    rd(0)
    rd(1)
    for n in range(16):
        if n + 2 < 16:
            rd(n + 2)
        f = sets[n % 3]
        a.wait_lg(("a", n))
        c0 = "0" if n == 0 else vr(ACC0, 16)
        c1 = "0" if n == 0 else vr(ACC1, 16)
        a(f"v_mfma_f32_32x32x16_f16 {vr(ACC0,16)}, {vr(f,4)}, {vr(f+4,4)}, {c0}")
        a.wait_lg(("b", n))
        a(f"v_mfma_f32_32x32x16_f16 {vr(ACC1,16)}, {vr(f,4)}, {vr(f+8,4)}, {c1}")
        a.wait_lg(("c", n))
        a(f"v_mfma_f32_32x32x16_f16 {vr(ACC1,16)}, {vr(f+12,4)}, {vr(f+4,4)}, {vr(ACC1,16)}")
    a(f"v_mul_u32_u24 v3, {PW}, v2")
    a("v_lshl_add_u32 v3, v1, 4, v3")
    a("v_lshrrev_b32 v4, 1, v2")
    a("v_and_b32 v5, 3, v1")
    a("v_lshl_add_u32 v4, v4, 2, v5")
    a(f"v_mul_u32_u24 v4, {PP}, v4")
    a("v_and_b32 v6, 1, v2")
    a("v_lshrrev_b32 v7, 2, v1")
    a("v_lshl_add_u32 v6, v6, 4, v7")
    a("v_lshl_add_u32 v4, v6, 4, v4")
    a("v_lshl_add_u32 v6, v2, 4, v7")
    a("v_mul_u32_u24 v6, 80, v6")
    a("v_lshl_add_u32 v6, v5, 4, v6")
    a("v_lshlrev_b32 v7, 4, v0")
    a("s_barrier")
    for k in range(8):
        a.lg(f"ds_write_b128 v3, {vr(ACC0+4*k,4)} offset:{k*PP}")
    a.lg(f"ds_read_b128 v[48:51], v6 offset:{UB}")
    a.wait_lg()
    a("s_barrier")
    for sw in range(4):
        for h in range(2):
            a.lg(f"ds_read_b128 {vr(16+8*sw+4*h,4)}, v4 offset:{sw*PW + 512*h}", ("p", sw))
    a.wait_vm("c")
    a("v_lshlrev_b32 v121, 16, v121")
    a("v_mov_b32 v122, v120")
    a("v_mov_b32 v123, v120")
    a.wait_lg(("p", 1))
    for k in range(4):
        a(f"v_pk_add_f32 {vr(16+2*k,2)}, {vr(16+2*k,2)}, {vr(24+2*k,2)}")
    a.wait_lg(("p", 3))
    for k in range(4):
        a(f"v_pk_add_f32 {vr(32+2*k,2)}, {vr(32+2*k,2)}, {vr(40+2*k,2)}")
    for k in range(4):
        a(f"v_pk_add_f32 {vr(16+2*k,2)}, {vr(16+2*k,2)}, {vr(32+2*k,2)}")
    for k in range(4):
        a(f"v_pk_mul_f32 {vr(16+2*k,2)}, {vr(16+2*k,2)}, v[122:123]")
    for k in range(4):
        a(f"v_fma_mix_f32 v{24+2*k}, v{48+k}, v121, 0 op_sel:[0,0,0] op_sel_hi:[1,0,0]")
        a(f"v_fma_mix_f32 v{25+2*k}, v{48+k}, v121, 0 op_sel:[1,0,0] op_sel_hi:[1,0,0]")
    for k in range(4):
        a(f"v_cvt_pk_bf16_f32 v{32+k}, v{16+2*k}, v{17+2*k}")
        a(f"v_cvt_pk_bf16_f32 v{36+k}, v{24+2*k}, v{25+2*k}")
    for k in range(4):
        a(f"v_lshlrev_b32 v{16+2*k}, 16, v{32+k}")
        a(f"v_and_b32 v{17+2*k}, 0xffff0000, v{32+k}")
        a(f"v_lshlrev_b32 v{24+2*k}, 16, v{36+k}")
        a(f"v_and_b32 v{25+2*k}, 0xffff0000, v{36+k}")
    for k in range(4):
        a(f"v_pk_add_f32 {vr(16+2*k,2)}, {vr(16+2*k,2)}, {vr(24+2*k,2)}")
    for k in range(4):
        a(f"v_cvt_pk_bf16_f32 v{32+k}, v{16+2*k}, v{17+2*k}")
    a.vm("buffer_store_dwordx4 v[32:35], v7, s[24:27], s31 offen")
    a("s_endpgm")


def role_g2(a):
    ACC = 0
    FR = 80
    vOA, vOB = 224, 228
    vX = 234
    vIT = 244
    ST_L = 0
    RED = 12288
    NS = 14
    DEPTH = 3
    a(f"s_load_dwordx2 s[4:5], s[0:1], {KA['ws']}")
    a(f"s_load_dwordx2 s[6:7], s[0:1], {KA['x']}")
    a(f"s_load_dwordx2 s[28:29], s[0:1], {KA['out']}")
    a("s_and_b32 s3, s2, 7")
    a("s_lshr_b32 s30, s2, 3")
    a("s_and_b32 s31, s3, 3")
    a("s_lshl_b32 s31, s31, 3")
    a("s_and_b32 s32, s30, 7")
    a("s_add_u32 s31, s31, s32")
    a("s_lshr_b32 s32, s3, 2")
    a("s_lshl_b32 s32, s32, 2")
    a("s_lshr_b32 s33, s30, 3")
    a("s_add_u32 s32, s32, s33")
    a("v_and_b32 v250, 63, v0")
    a("v_lshrrev_b32 v251, 6, v0")
    a("v_readfirstlane_b32 s33, v251")
    a("v_lshlrev_b32 v252, 4, v250")
    a(f"s_mul_i32 s34, s31, {4*54*1024}")
    a(f"s_mul_i32 s35, s32, {5*54*1024}")
    for i in range(4):
        a(f"s_add_u32 s36, s34, {i*54*1024}")
        a(f"v_add_u32 v{vOA+i}, s36, v252")
    for i in range(5):
        a(f"s_add_u32 s36, s35, {i*54*1024}")
        a(f"v_add_u32 v{vOB+i}, s36, v252")
    a(f"s_mul_i32 s36, s33, {NS*1024}")
    a("s_waitcnt lgkmcnt(0)")
    srd(a, 8, 4, SZ_ACT, WS_ACT)
    srd(a, 12, 4, SZ_W2F, WS_W2F)
    srd(a, 16, 4, SZ_ST, WS_ST)
    srd(a, 20, 6, 2048 * 1280)
    srd(a, 24, 28, 2048 * 1280)

    def loads(n):
        f = FR + 36 * (n % (DEPTH + 1))
        so = "s36"
        if n >= 12:
            a(f"s_cmp_lt_u32 s36, {54*1024}")
            a("s_cselect_b32 s37, s36, 0x7fff0000")
            so = "s37"
        for i in range(5):
            a.vm(f"buffer_load_dwordx4 {vr(f+16+4*i,4)}, v{vOB+i}, s[12:15], {so} offen", ("f", n))
        for i in range(4):
            a.vm(f"buffer_load_dwordx4 {vr(f+4*i,4)}, v{vOA+i}, s[8:11], {so} offen", ("f", n))
        a("s_add_u32 s36, s36, 1024")

    for n in range(DEPTH):
        loads(n)
    a("v_lshrrev_b32 v253, 3, v250")
    a("v_and_b32 v254, 7, v250")
    a("v_lshlrev_b32 v253, 12, v253")
    a("v_lshl_add_u32 v253, v254, 4, v253")
    a("s_mul_i32 s38, s32, 80")
    a("s_mul_i32 s39, s33, 24")
    a("s_add_u32 s38, s38, s39")
    a("s_lshl_b32 s38, s38, 12")
    a("s_lshl_b32 s39, s31, 7")
    a("s_add_u32 s38, s38, s39")
    a("s_mul_i32 s39, s33, 3072")
    for i in range(3):
        a(f"s_add_u32 m0, s39, {ST_L + 1024*i}")
        a.vm("buffer_load_dwordx4 v253, s[16:19], s38 offen lds", "s")
        a(f"s_add_u32 s38, s38, {8*4096}")
    a("s_movk_i32 s40, 3277")
    for i in range(5):
        t = vIT + i
        a(f"v_add_u32 v253, {64*i}, v250")
        a("v_mul_u32_u24 v254, s40, v253")
        a("v_lshrrev_b32 v254, 16, v254")
        a("v_mul_u32_u24 v255, 20, v254")
        a("v_sub_u32 v253, v253, v255")
        a(f"v_mul_u32_u24 v{t}, 1280, v254")
        a(f"v_lshl_add_u32 v{t}, v253, 3, v{t}")
    a("s_lshl_b32 s41, s31, 2")
    a("s_add_u32 s41, s41, s33")
    a("s_mul_i32 s41, s41, 20480")
    a("s_mul_i32 s42, s32, 160")
    a("s_add_u32 s41, s41, s42")
    for i in range(5):
        a.vm(f"buffer_load_dwordx2 {vr(vX+2*i,2)}, v{vIT+i}, s[20:23], s41 offen", "x")
    for n in range(NS):
        if n + DEPTH < NS:
            loads(n + DEPTH)
        a.wait_vm(("f", n))
        f = FR + 36 * (n % (DEPTH + 1))
        for rt in range(4):
            for ct in range(5):
                acc = ACC + (ct * 4 + rt) * 4
                c = "0" if n == 0 else vr(acc, 4)
                a(f"v_mfma_f32_16x16x32_bf16 {vr(acc,4)}, {vr(f+16+4*ct,4)}, {vr(f+4*rt,4)}, {c}")
    T = FR
    for rt in range(4):
        a(f"s_sub_u32 s43, s33, {rt+1}")
        a("s_and_b32 s43, s43, 3")
        a("s_mul_i32 s44, s43, 5120")
        a(f"s_add_u32 s44, s44, {RED + rt*15360}")
        a(f"v_add_u32 v{T+rt}, s44, v252")
    for rt in range(4):
        a(f"s_cmp_lg_u32 s33, {rt}")
        a("s_cselect_b64 exec, -1, 0")
        for ct in range(5):
            acc = ACC + (ct * 4 + rt) * 4
            a.lg(f"ds_write_b128 v{T+rt}, {vr(acc,4)} offset:{ct*1024}")
    a("s_mov_b64 exec, -1")
    OWN = T + 8
    for rt in range(4):
        a(f"s_cmp_eq_u32 s33, {rt}")
        a("s_cselect_b64 exec, -1, 0")
        for ct in range(5):
            acc = ACC + (ct * 4 + rt) * 4
            for r in range(4):
                a(f"v_mov_b32 v{OWN+4*ct+r}, v{acc+r}")
    a("s_mov_b64 exec, -1")
    a("s_mul_i32 s44, s33, 15360")
    a(f"s_add_u32 s44, s44, {RED}")
    a(f"v_add_u32 v{T+4}, s44, v252")
    a(f"v_and_b32 v{T+5}, 15, v250")
    a(f"v_lshrrev_b32 v{T+6}, 4, v250")
    a(f"v_lshrrev_b32 v{T+7}, 2, v{T+5}")
    a(f"v_lshl_add_u32 v{T+7}, v{T+6}, 2, v{T+7}")
    a(f"v_lshlrev_b32 v{T+7}, 7, v{T+7}")
    a(f"v_and_b32 v253, 3, v{T+5}")
    a(f"v_lshl_add_u32 v{T+7}, v253, 3, v{T+7}")
    a(f"v_lshl_add_u32 v{T+7}, v251, 5, v{T+7}")
    a(f"v_mul_u32_u24 v253, 168, v{T+5}")
    a(f"v_lshl_add_u32 v253, v{T+6}, 3, v253")
    a("v_add_u32 v253, s44, v253")
    a.wait_vm("x")
    a.wait_lg()
    a("s_barrier")
    P = T + 32
    for src in range(3):
        for ct in range(5):
            a.lg(f"ds_read_b128 {vr(P+20*src+4*ct,4)}, v{T+4} offset:{src*5120+ct*1024}", ("r", src))
    S = T + 96
    for ct in range(5):
        a.lg(f"ds_read_b64_tr_b16 {vr(S+2*ct,2)}, v{T+7} offset:{ST_L + ct*2048}", "s")
    for src in range(3):
        a.wait_lg(("r", src))
        for k in range(10):
            a(f"v_pk_add_f32 {vr(OWN+2*k,2)}, {vr(OWN+2*k,2)}, {vr(P+20*src+2*k,2)}")
    Q = P
    for k in range(10):
        a(f"v_cvt_pk_bf16_f32 v{Q+k}, v{OWN+2*k}, v{OWN+2*k+1}")
    for k in range(10):
        a(f"v_lshlrev_b32 v{OWN+2*k}, 16, v{Q+k}")
        a(f"v_and_b32 v{OWN+2*k+1}, 0xffff0000, v{Q+k}")
    E = P + 20
    for k in range(20):
        a(f"v_mul_f32 v{E+k}, 0xbfb8aa3b, v{OWN+k}")
    for k in range(20):
        a(f"v_exp_f32 v{E+k}, v{E+k}")
    for k in range(20):
        a(f"v_add_f32 v{E+k}, 1.0, v{E+k}")
    for k in range(20):
        a(f"v_rcp_f32 v{E+k}, v{E+k}")
    for k in range(10):
        a(f"v_pk_mul_f32 {vr(OWN+2*k,2)}, {vr(OWN+2*k,2)}, {vr(E+2*k,2)}")
    for k in range(10):
        a(f"v_cvt_pk_bf16_f32 v{Q+k}, v{OWN+2*k}, v{OWN+2*k+1}")
    a.wait_lg("s")
    for k in range(10):
        a(f"v_lshlrev_b32 v{OWN+2*k}, 16, v{Q+k}")
        a(f"v_and_b32 v{OWN+2*k+1}, 0xffff0000, v{Q+k}")
        a(f"v_lshlrev_b32 v{E+2*k}, 16, v{S+k}")
        a(f"v_and_b32 v{E+2*k+1}, 0xffff0000, v{S+k}")
    for k in range(10):
        a(f"v_pk_mul_f32 {vr(OWN+2*k,2)}, {vr(OWN+2*k,2)}, {vr(E+2*k,2)}")
    for k in range(10):
        a(f"v_cvt_pk_bf16_f32 v{Q+k}, v{OWN+2*k}, v{OWN+2*k+1}")
    for ct in range(5):
        a.lg(f"ds_write_b64 v253, {vr(Q+2*ct,2)} offset:{ct*32}")
    for i in range(5):
        a(f"v_add_u32 v254, {64*i}, v250")
        a("v_mul_u32_u24 v255, s40, v254")
        a("v_lshrrev_b32 v255, 16, v255")
        a(f"v_lshlrev_b32 v254, 3, v254")
        a(f"v_lshl_add_u32 v254, v255, 3, v254")
        a(f"v_add_u32 v254, s44, v254")
        a.lg(f"ds_read_b64 {vr(E+2*i,2)}, v254", ("i", i))
    for i in range(5):
        a.wait_lg(("i", i))
        for d in range(2):
            k = 2 * i + d
            a(f"v_lshlrev_b32 v{OWN+2*k}, 16, v{E+k}")
            a(f"v_and_b32 v{OWN+2*k+1}, 0xffff0000, v{E+k}")
            a(f"v_lshlrev_b32 v{Q+2*d}, 16, v{vX+k}")
            a(f"v_and_b32 v{Q+2*d+1}, 0xffff0000, v{vX+k}")
            a(f"v_pk_add_f32 {vr(OWN+2*k,2)}, {vr(OWN+2*k,2)}, {vr(Q+2*d,2)}")
            a(f"v_cvt_pk_bf16_f32 v{vX+k}, v{OWN+2*k}, v{OWN+2*k+1}")
        a.vm(f"buffer_store_dwordx2 {vr(vX+2*i,2)}, v{vIT+i}, s[24:27], s41 offen")
    a("s_endpgm")
```

```python
import sys
from asmlib import Asm, vr, sr

NAME = "recurrent_scan__ssm_conv_s4__dense_activation_mish__prompt"

WS_ACT, SZ_ACT = 0x0000000, 128 * 54 * 1024
WS_W2F, SZ_W2F = 0x0700000, 40 * 54 * 1024
WS_UT, SZ_UT = 0x0A00000, 640 * 2048 * 2
KR_PITCH = 4160
WS_KR, SZ_KR = 0x0D00000, 640 * KR_PITCH
WS_KS, SZ_KS = 0x1000000, 640 * 4
WS_ST, SZ_ST = 0x1100000, 640 * 2048 * 2

KA = dict(x=0, Are=8, Aim=16, Bre=24, Bim=32, Cre=40, Cim=48, logdt=56, Dskip=64, Bx=72, w1=80, b1=88, w2=96,
          out=104, dbg=112, ws=120)

N_G1, N_KG, N_LN, N_W2 = 224, 160, 64, 54


def srd(a, d, base_pair, size, off=0):
    if off:
        a(f"s_add_u32 s{d}, s{base_pair}, {off}")
        a(f"s_addc_u32 s{d+1}, s{base_pair+1}, 0")
    else:
        a(f"s_mov_b32 s{d}, s{base_pair}")
        a(f"s_mov_b32 s{d+1}, s{base_pair+1}")
    a(f"s_mov_b32 s{d+2}, {size}")
    a(f"s_mov_b32 s{d+3}, 0x00020000")


def row_stats(a, vsum, vsq, t0, t1):
    a(f"v_mul_f32 v{vsum}, 0x3acccccd, v{vsum}")
    a(f"v_mul_f32 v{vsq}, 0x3acccccd, v{vsq}")
    a(f"v_fma_f32 v{vsq}, -v{vsum}, v{vsum}, v{vsq}")
    a(f"v_max_f32 v{vsq}, 0, v{vsq}")
    a(f"v_cvt_pk_bf16_f32 v{t0}, v{vsum}, v{vsq}")
    a(f"v_lshlrev_b32 v{vsum}, 16, v{t0}")
    a(f"v_and_b32 v{t1}, 0xffff0000, v{t0}")
    a(f"v_add_f32 v{t1}, 0x3727c5ac, v{t1}")
    a(f"v_cvt_pk_bf16_f32 v{t1}, v{t1}, v{t1}")
    a(f"v_lshlrev_b32 v{t1}, 16, v{t1}")
    a(f"v_sqrt_f32 v{t1}, v{t1}")
    a(f"v_cvt_pk_bf16_f32 v{t1}, v{t1}, v{t1}")
    a(f"v_lshlrev_b32 v{t1}, 16, v{t1}")
    a(f"v_rcp_f32 v{vsq}, v{t1}")


def role_ln(a):
    P = 1312
    a(f"s_load_dwordx2 s[4:5], s[0:1], {KA['x']}")
    a(f"s_load_dwordx2 s[6:7], s[0:1], {KA['ws']}")
    a("v_lshrrev_b32 v1, 3, v0")
    a("v_and_b32 v2, 7, v0")
    a("v_mul_u32_u24 v3, 1280, v1")
    a("v_lshl_add_u32 v3, v2, 4, v3")
    a("s_mul_i32 s3, s2, 40960")
    a("s_mov_b32 s20, 0x3f803f80")
    a("s_waitcnt lgkmcnt(0)")
    srd(a, 8, 4, 2048 * 1280)
    srd(a, 12, 6, SZ_UT, WS_UT)
    X = 10
    for i in range(10):
        a.vm(f"buffer_load_dwordx4 {vr(X+4*i,4)}, v3, s[8:11], s3 offen offset:{128*i}", i)
    a("v_mov_b32 v4, 0")
    a("v_mov_b32 v5, 0")
    a(f"v_mul_u32_u24 v6, {P}, v1")
    a("v_lshl_add_u32 v6, v2, 4, v6")
    for i in range(10):
        a.wait_vm(i)
        for d in range(4):
            r = X + 4 * i + d
            a(f"v_dot2_f32_bf16 v4, v{r}, s20, v4")
            a(f"v_dot2_f32_bf16 v5, v{r}, v{r}, v5")
    for ctl in ("quad_perm:[1,0,3,2]", "quad_perm:[2,3,0,1]", "row_half_mirror"):
        a(f"v_add_f32_dpp v4, v4, v4 {ctl} row_mask:0xf bank_mask:0xf")
        a(f"v_add_f32_dpp v5, v5, v5 {ctl} row_mask:0xf bank_mask:0xf")
    row_stats(a, 4, 5, 7, 8)
    a("v_sub_f32 v52, 0, v4")
    a("v_sub_f32 v53, 0, v4")
    a("v_mov_b32 v54, v5")
    a("v_mov_b32 v55, v5")
    T = 56
    for i in range(10):
        for d in range(4):
            r = X + 4 * i + d
            t = T + 4 * (d & 1)
            a(f"v_lshlrev_b32 v{t}, 16, v{r}")
            a(f"v_and_b32 v{t+1}, 0xffff0000, v{r}")
            a(f"v_pk_add_f32 {vr(t,2)}, {vr(t,2)}, v[52:53]")
            a(f"v_cvt_pk_bf16_f32 v{t+2}, v{t}, v{t+1}")
            a(f"v_lshlrev_b32 v{t}, 16, v{t+2}")
            a(f"v_and_b32 v{t+1}, 0xffff0000, v{t+2}")
            a(f"v_pk_mul_f32 {vr(t,2)}, {vr(t,2)}, v[54:55]")
            a(f"v_cvt_pk_bf16_f32 v{t+2}, v{t}, v{t+1}")
            a(f"v_lshlrev_b32 v{t}, 16, v{t+2}")
            a(f"v_and_b32 v{t+1}, 0xffff0000, v{t+2}")
            a(f"v_cvt_pk_f16_f32 v{r}, v{t}, v{t+1}")
        a.lg(f"ds_write_b128 v6, {vr(X+4*i,4)} offset:{128*i}")
    a("v_and_b32 v1, 63, v0")
    a("v_lshrrev_b32 v2, 6, v0")
    a("v_and_b32 v3, 15, v1")
    a("v_lshrrev_b32 v4, 4, v1")
    a("v_lshrrev_b32 v5, 2, v3")
    a("v_lshl_add_u32 v5, v4, 2, v5")
    a(f"v_mul_u32_u24 v5, {P}, v5")
    a("v_and_b32 v7, 3, v3")
    a("v_lshl_add_u32 v5, v7, 3, v5")
    a("v_mul_u32_u24 v7, 320, v2")
    a("v_add_u32 v5, v5, v7")
    a.wait_lg()
    a("s_barrier")
    for i in range(10):
        a.lg(f"ds_read_b64_tr_b16 {vr(X+4*i,2)}, v5 offset:{32*i}")
        a.lg(f"ds_read_b64_tr_b16 {vr(X+4*i+2,2)}, v5 offset:{32*i+16*P}")
    a("v_mul_u32_u24 v7, 10240, v2")
    a("v_lshl_add_u32 v8, v3, 6, v7")
    a("v_lshrrev_b32 v9, 1, v3")
    a("v_and_b32 v9, 3, v9")
    a("v_lshrrev_b32 v52, 1, v4")
    a("v_xor_b32 v9, v9, v52")
    a("v_lshl_add_u32 v8, v9, 4, v8")
    a("v_and_b32 v9, 1, v4")
    a("v_lshl_add_u32 v8, v9, 3, v8")
    a("v_xor_b32 v9, 32, v8")
    a("v_lshrrev_b32 v52, 2, v1")
    a("v_lshl_add_u32 v52, v52, 6, v7")
    a("v_lshrrev_b32 v53, 3, v1")
    a("v_xor_b32 v53, v53, v1")
    a("v_and_b32 v53, 3, v53")
    a("v_lshl_add_u32 v52, v53, 4, v52")
    a("v_lshl_add_u32 v53, v1, 4, v7")
    a.wait_lg()
    a("s_barrier")
    for i in range(10):
        a.lg(f"ds_write_b64 v8, {vr(X+4*i,2)} offset:{1024*i}")
        a.lg(f"ds_write_b64 v9, {vr(X+4*i+2,2)} offset:{1024*i}")
    for i in range(10):
        a.lg(f"ds_read_b128 {vr(X+4*i,4)}, v52 offset:{1024*i}", i)
    for i in range(10):
        a.wait_lg(i)
        if i % 4 == 0 and i:
            a(f"s_add_u32 s3, s3, 4096")
        a.vm(f"buffer_store_dwordx4 {vr(X+4*i,4)}, v53, s[12:15], s3 offen offset:{1024*(i%4)}")
    a("s_endpgm")


def role_w2(a):
    P = 1312
    a(f"s_load_dwordx2 s[4:5], s[0:1], {KA['w2']}")
    a(f"s_load_dwordx2 s[6:7], s[0:1], {KA['ws']}")
    a("v_lshrrev_b32 v1, 3, v0")
    a("v_and_b32 v2, 7, v0")
    a("v_mul_u32_u24 v3, 1280, v1")
    a("v_lshl_add_u32 v3, v2, 4, v3")
    a("s_mul_i32 s3, s2, 40960")
    a("s_waitcnt lgkmcnt(0)")
    srd(a, 8, 4, 1728 * 1280)
    srd(a, 12, 6, SZ_W2F, WS_W2F)
    X = 10
    for i in range(10):
        a.vm(f"buffer_load_dwordx4 {vr(X+4*i,4)}, v3, s[8:11], s3 offen offset:{128*i}", i)
    a(f"v_mul_u32_u24 v6, {P}, v1")
    a("v_lshl_add_u32 v6, v2, 4, v6")
    a("v_and_b32 v1, 63, v0")
    a("v_lshrrev_b32 v2, 6, v0")
    a("v_and_b32 v3, 15, v1")
    a("v_lshrrev_b32 v4, 4, v1")
    a("v_readfirstlane_b32 s16, v2")
    a("v_lshrrev_b32 v5, 2, v3")
    a("v_lshrrev_b32 v7, 1, v4")
    a("v_lshl_add_u32 v5, v7, 4, v5")
    a("v_and_b32 v7, 1, v4")
    a("v_lshl_add_u32 v5, v7, 2, v5")
    a(f"v_mul_u32_u24 v5, {P}, v5")
    a("v_and_b32 v7, 3, v3")
    a("v_lshl_add_u32 v5, v7, 3, v5")
    a("v_mul_u32_u24 v7, 320, v2")
    a("v_add_u32 v5, v5, v7")
    a("v_lshlrev_b32 v7, 4, v1")
    a("s_mul_i32 s17, s16, 540")
    a("s_add_u32 s17, s17, s2")
    a("s_lshl_b32 s17, s17, 10")
    for i in range(10):
        a.wait_vm(i)
        a.lg(f"ds_write_b128 v6, {vr(X+4*i,4)} offset:{128*i}")
    a.wait_lg()
    a("s_barrier")
    for i in range(10):
        a.lg(f"ds_read_b64_tr_b16 {vr(X+4*i,2)}, v5 offset:{32*i}")
        a.lg(f"ds_read_b64_tr_b16 {vr(X+4*i+2,2)}, v5 offset:{32*i+8*P}", i)
    for i in range(10):
        a.wait_lg(i)
        a.vm(f"buffer_store_dwordx4 {vr(X+4*i,4)}, v7, s[12:15], s17 offen")
        a(f"s_add_u32 s17, s17, {54*1024}")
    a("s_endpgm")


def role_g1(a):
    ACC, XB, WF = 0, 64, 224
    vTRB, vDMA, vSUM, vSQ, vCS0, vCS1, vT0, vT1 = 248, 249, 250, 251, 252, 253, 254, 255
    vTWA, vTWB, vTRD, vXO = 32, 33, 34, 35
    SCR = 0
    RING = 16384
    a(f"s_load_dwordx2 s[4:5], s[0:1], {KA['x']}")
    a(f"s_load_dwordx2 s[6:7], s[0:1], {KA['ws']}")
    a(f"s_load_dwordx4 s[24:27], s[0:1], {KA['w1']}")
    a("s_and_b32 s3, s2, 7")
    a("s_lshr_b32 s28, s2, 3")
    a("s_and_b32 s29, s3, 3")
    a("s_lshl_b32 s29, s29, 2")
    a("s_and_b32 s30, s28, 3")
    a("s_add_u32 s29, s29, s30")
    a("s_lshr_b32 s30, s3, 2")
    a("s_mul_i32 s30, s30, 7")
    a("s_lshr_b32 s31, s28, 2")
    a("s_add_u32 s30, s30, s31")
    a("v_and_b32 v1, 63, v0")
    a("v_lshrrev_b32 v2, 6, v0")
    a("v_readfirstlane_b32 s31, v2")
    a("s_mov_b32 s20, 0x3f803f80")
    a("v_lshrrev_b32 v3, 2, v1")
    a("v_and_b32 v4, 3, v1")
    a("v_and_b32 v5, 7, v3")
    a("v_lshrrev_b32 v6, 3, v3")
    a(f"v_mul_u32_u24 v{vXO}, 5120, v5")
    a(f"v_lshl_add_u32 v{vXO}, v6, 6, v{vXO}")
    a(f"v_lshl_add_u32 v{vXO}, v4, 4, v{vXO}")
    a("v_lshl_add_u32 v7, v6, 2, v4")
    a("v_and_b32 v8, 1, v3")
    a("v_lshlrev_b32 v8, 2, v8")
    a("v_and_b32 v9, 2, v3")
    a("v_or_b32 v8, v8, v9")
    a("v_xor_b32 v7, v7, v8")
    a(f"v_lshlrev_b32 v{vTWA}, 9, v5")
    a(f"v_lshl_add_u32 v{vTWA}, v7, 4, v{vTWA}")
    a(f"v_lshlrev_b32 v8, 12, v2")
    a(f"v_add_u32 v{vTWA}, v{vTWA}, v8")
    a(f"v_xor_b32 v{vTWB}, 16, v{vTWA}")
    a("v_and_b32 v9, 31, v1")
    a("v_lshrrev_b32 v10, 5, v1")
    a("v_lshl_add_u32 v11, v10, 2, v2")
    a("v_lshrrev_b32 v12, 1, v9")
    a("v_and_b32 v12, 1, v12")
    a("v_lshrrev_b32 v13, 2, v9")
    a("v_and_b32 v13, 2, v13")
    a("v_and_b32 v14, 4, v9")
    a("v_or_b32 v12, v12, v13")
    a("v_or_b32 v12, v12, v14")
    a("v_xor_b32 v11, v11, v12")
    a(f"v_lshl_add_u32 v{vTRD}, v9, 7, v8")
    a(f"v_lshl_add_u32 v{vTRD}, v11, 4, v{vTRD}")
    a("v_and_b32 v11, 15, v1")
    a("v_lshrrev_b32 v12, 2, v11")
    a("v_lshl_add_u32 v12, v2, 3, v12")
    a("v_lshl_add_u32 v12, v10, 5, v12")
    a(f"v_lshlrev_b32 v{vTRB}, 7, v12")
    a("v_lshrrev_b32 v12, 3, v11")
    a(f"v_lshl_add_u32 v{vTRB}, v12, 6, v{vTRB}")
    a("v_lshrrev_b32 v12, 4, v1")
    a("v_and_b32 v12, 1, v12")
    a(f"v_lshl_add_u32 v{vTRB}, v12, 5, v{vTRB}")
    a("v_and_b32 v12, 3, v11")
    a(f"v_lshl_add_u32 v{vTRB}, v12, 3, v{vTRB}")
    a(f"v_add_u32 v{vTRB}, {RING}, v{vTRB}")
    a("v_lshrrev_b32 v11, 3, v1")
    a("v_and_b32 v12, 7, v1")
    a("v_lshlrev_b32 v13, 1, v11")
    a("v_and_b32 v13, 4, v13")
    a("v_xor_b32 v12, v12, v13")
    a(f"v_mul_u32_u24 v{vDMA}, 3456, v11")
    a(f"v_lshl_add_u32 v{vDMA}, v12, 4, v{vDMA}")
    a(f"v_mov_b32 v{vSUM}, 0")
    a(f"v_mov_b32 v{vSQ}, 0")
    a(f"v_mov_b32 v{vCS0}, 0")
    a(f"v_mov_b32 v{vCS1}, 0")
    a("v_lshlrev_b32 v36, 2, v1")
    a("v_mov_b32 v37, v1")
    a("s_waitcnt lgkmcnt(0)")
    srd(a, 8, 4, 2048 * 1280)
    srd(a, 12, 24, 640 * 3456)
    srd(a, 16, 6, SZ_ACT, WS_ACT)
    srd(a, 32, 26, 1728 * 2)
    a("s_lshl_b32 s36, s29, 2")
    a("s_add_u32 s36, s36, s31")
    a("s_mul_i32 s36, s36, 40960")
    a("s_add_u32 s37, s36, 2560")
    a("s_mul_i32 s38, s31, 55296")
    a("s_lshl_b32 s3, s30, 8")
    a("s_add_u32 s38, s38, s3")
    a("s_lshl_b32 s39, s31, 11")
    a.vm("buffer_load_dword v38, v36, s[32:35], s3 offen", "b1")

    def dma(st):
        hf, sg = st // 10, st % 10
        slot = st % 8
        for i in range(2):
            a(f"s_add_u32 s40, s38, {(64*sg + 8*i)*3456 + 128*hf}")
            a(f"s_add_u32 m0, s39, {RING + slot*8192 + i*1024}")
            a.vm(f"buffer_load_dwordx4 v{vDMA}, s[12:15], s40 offen lds", ("w", st))

    def xload(sg):
        for j in range(4):
            so = "s36" if j < 2 else "s37"
            a.vm(f"buffer_load_dwordx4 {vr(XB+16*sg+4*j,4)}, v{vXO}, s[8:11], {so} offen offset:{(j&1)*1280+128*sg}", ("x", sg))

    for s in range(10):
        if s < 8:
            dma(s)
        xload(s)

    def transit_w(sg):
        a.wait_vm(("x", sg))
        for j in range(4):
            a.lg(f"ds_write_b128 v{vTWA if j < 2 else vTWB}, {vr(XB+16*sg+4*j,4)} offset:{128*j}")

    def transit_r(sg):
        for p in range(4):
            if p == 0:
                ad = vTRD
            else:
                a(f"v_xor_b32 v{vT0}, {16*p}, v{vTRD}")
                ad = vT0
            a.lg(f"ds_read_b128 {vr(XB+16*sg+4*p,4)}, v{ad}", ("xr", sg, p))

    def wread(gs):
        st, p = gs // 4, gs % 4
        slot = st % 8
        for tile in range(2):
            fb = WF + 4 * ((2 * gs + tile) % 6)
            x = p * 1024 + tile * 64
            if x == 0:
                ad = vTRB
            else:
                ad = vT1 if tile else vT0
                a(f"v_xor_b32 v{ad}, {x}, v{vTRB}")
            a.lg(f"ds_read_b64_tr_b16 {vr(fb,2)}, v{ad} offset:{slot*8192}")
            a.lg(f"ds_read_b64_tr_b16 {vr(fb+2,2)}, v{ad} offset:{slot*8192+512}", ("wf", gs, tile))

    transit_w(0)
    transit_r(0)
    a.wait_vm(("w", 0))
    a("s_barrier")
    wread(0)
    wread(1)

    def half(hf):
        for sg in range(10):
            st = 10 * hf + sg
            for p in range(4):
                gs = 4 * st + p
                if p == 0 and hf == 0 and sg < 9:
                    transit_w(sg + 1)
                if p == 2:
                    if st + 1 < 20:
                        a.wait_vm(("w", st + 1))
                        if st == 9:
                            a.wait_lg()
                        a("s_barrier")
                        if st >= 1 and st + 7 < 20:
                            dma(st + 7)
                    if hf == 0 and sg < 9:
                        transit_r(sg + 1)
                if p == 0 and st == 9:
                    a.wait_vm("b1")
                    a(f"v_lshlrev_b32 v40, 16, v38")
                    a(f"v_and_b32 v41, 0xffff0000, v38")
                    a(f"v_mov_b32 v42, 0")
                    a(f"v_mov_b32 v43, 0")
                    a(f"v_lshlrev_b32 v39, 3, v37")
                    a("s_cmp_eq_u32 s31, 0")
                    a("s_cselect_b64 exec, -1, 0")
                    a.lg(f"ds_write_b64 v39, v[42:43] offset:{SCR}")
                    a.lg(f"ds_write_b64 v39, v[40:41] offset:{SCR+512}")
                    a("s_mov_b64 exec, -1")
                if gs + 2 < 80:
                    wread(gs + 2)
                if hf == 0:
                    a.wait_lg(("xr", sg, p))
                xf = XB + 16 * sg + 4 * p
                for tile in range(2):
                    fb = WF + 4 * ((2 * gs + tile) % 6)
                    a.wait_lg(("wf", gs, tile))
                    acc = ACC + 32 * hf + 16 * tile
                    c = "0" if (sg == 0 and p == 0) else vr(acc, 16)
                    a(f"v_mfma_f32_32x32x16_bf16 {vr(acc,16)}, {vr(fb,4)}, {vr(xf,4)}, {c}")
                    if hf == 0:
                        for d in (2 * tile, 2 * tile + 1):
                            a(f"v_dot2_f32_bf16 v{vSUM}, v{xf+d}, s20, v{vSUM}")
                            a(f"v_dot2_f32_bf16 v{vSQ}, v{xf+d}, v{xf+d}, v{vSQ}")
                    if p == 0:
                        cs = vCS1 if tile else vCS0
                        for d in range(4):
                            a(f"v_dot2_f32_bf16 v{cs}, v{fb+d}, s20, v{cs}")
        t = vT0
        a(f"v_mbcnt_lo_u32_b32 v{t}, -1, 0")
        a(f"v_mbcnt_hi_u32_b32 v{t}, -1, v{t}")
        a(f"v_and_b32 v{t}, 31, v{t}")
        a(f"v_lshlrev_b32 v{t}, 2, v{t}")
        a.lg(f"ds_add_f32 v{t}, v{vCS0} offset:{SCR + 256*hf}")
        a.lg(f"ds_add_f32 v{t}, v{vCS1} offset:{SCR + 256*hf + 128}")
        a(f"v_mov_b32 v{vCS0}, 0")
        a(f"v_mov_b32 v{vCS1}, 0")

    def stats_fin():
        a(f"v_mov_b32 v{vT0}, v{vSUM}")
        a(f"v_mov_b32 v{vT1}, v{vSQ}")
        a(f"v_permlane32_swap_b32 v{vSUM}, v{vT0}")
        a(f"v_permlane32_swap_b32 v{vSQ}, v{vT1}")
        a(f"v_add_f32 v{vSUM}, v{vSUM}, v{vT0}")
        a(f"v_add_f32 v{vSQ}, v{vSQ}, v{vT1}")
        row_stats(a, vSUM, vSQ, vT0, vT1)

    def epilogue(halves):
        E = XB
        vL, vLA, vST = E, E + 1, E + 2
        NM, RD = E + 4, E + 6
        a(f"v_mbcnt_lo_u32_b32 v{vL}, -1, 0")
        a(f"v_mbcnt_hi_u32_b32 v{vL}, -1, v{vL}")
        a(f"v_lshrrev_b32 v{vLA}, 5, v{vL}")
        a(f"v_lshlrev_b32 v{vST}, 8, v{vLA}")
        a(f"v_lshlrev_b32 v{vLA}, 4, v{vLA}")
        a(f"v_and_b32 v{E+3}, 15, v{vL}")
        a(f"v_lshl_add_u32 v{vST}, v{E+3}, 4, v{vST}")
        a(f"v_lshrrev_b32 v{E+3}, 4, v{vL}")
        a(f"v_and_b32 v{E+3}, 1, v{E+3}")
        a(f"v_mul_u32_u24 v{E+3}, {54*1024}, v{E+3}")
        a(f"v_add_u32 v{vST}, v{vST}, v{E+3}")
        a(f"v_sub_f32 v{NM}, 0, v{vSUM}")
        a(f"v_sub_f32 v{NM+1}, 0, v{vSUM}")
        a(f"v_mov_b32 v{RD}, v{vSQ}")
        a(f"v_mov_b32 v{RD+1}, v{vSQ}")
        a("s_lshl_b32 s40, s29, 2")
        a("s_add_u32 s40, s40, s31")
        a("s_mul_i32 s40, s40, 108")
        a("s_lshl_b32 s41, s30, 2")
        a("s_add_u32 s40, s40, s41")
        a("s_lshl_b32 s40, s40, 10")
        a("s_mov_b32 s42, 0x3fb8aa3b")
        a("s_mov_b32 s43, 0x3fb8aa3b")
        a("s_mov_b32 s44, 2.0")
        a("s_mov_b32 s45, 2.0")
        a.wait_lg()
        a("s_barrier")
        CB = E + 8
        groups = [(hf, tile, i) for hf in halves for tile in range(2) for i in range(4)]

        def rd(k):
            hf, tile, i = groups[k]
            r = CB + 8 * (k % 4)
            off = SCR + (64 * hf + 32 * tile + 8 * i) * 4
            a.lg(f"ds_read_b128 {vr(r,4)}, v{vLA} offset:{off}")
            a.lg(f"ds_read_b128 {vr(r+4,4)}, v{vLA} offset:{off+512}", ("cb", k))
        for k in range(min(3, len(groups))):
            rd(k)
        TM = E + 40
        OUT = E + 64
        for k, (hf, tile, i) in enumerate(groups):
            if k + 3 < len(groups):
                rd(k + 3)
            a.wait_lg(("cb", k))
            r = CB + 8 * (k % 4)
            ac = ACC + 32 * hf + 16 * tile + 4 * i
            ip = i >> 1
            ob = OUT + 4 * ((k >> 1) % 4)
            H, T2, EE, NN = TM, TM + 4, TM + 8, TM + 12
            for pr in range(2):
                o = 2 * pr
                a(f"v_pk_fma_f32 {vr(H+o,2)}, {vr(r+o,2)}, {vr(NM,2)}, {vr(ac+o,2)}")
            for pr in range(2):
                o = 2 * pr
                a(f"v_pk_fma_f32 {vr(H+o,2)}, {vr(H+o,2)}, {vr(RD,2)}, {vr(r+4+o,2)}")
            for pr in range(2):
                o = 2 * pr
                a(f"v_pk_mul_f32 {vr(T2+o,2)}, {vr(H+o,2)}, s[42:43]")
            for e in range(4):
                a(f"v_min_f32 v{T2+e}, 0x41f00000, v{T2+e}")
            for e in range(4):
                a(f"v_exp_f32 v{EE+e}, v{T2+e}")
            for pr in range(2):
                o = 2 * pr
                a(f"v_pk_add_f32 {vr(T2+o,2)}, {vr(EE+o,2)}, s[44:45]")
            for pr in range(2):
                o = 2 * pr
                a(f"v_pk_mul_f32 {vr(NN+o,2)}, {vr(EE+o,2)}, {vr(T2+o,2)}")
            for pr in range(2):
                o = 2 * pr
                a(f"v_pk_add_f32 {vr(T2+o,2)}, {vr(NN+o,2)}, s[44:45]")
            for e in range(4):
                a(f"v_rcp_f32 v{T2+e}, v{T2+e}")
            for pr in range(2):
                o = 2 * pr
                a(f"v_pk_mul_f32 {vr(NN+o,2)}, {vr(NN+o,2)}, {vr(H+o,2)}")
            for pr in range(2):
                o = 2 * pr
                a(f"v_pk_mul_f32 {vr(NN+o,2)}, {vr(NN+o,2)}, {vr(T2+o,2)}")
            for pr in range(2):
                o = 2 * pr
                a(f"v_cvt_pk_bf16_f32 v{ob + 2*(i&1) + pr}, v{NN+o}, v{NN+o+1}")
            if i & 1:
                a.vm(f"buffer_store_dwordx4 {vr(ob,4)}, v{vST}, s[16:19], s40 offen offset:{(2*hf+tile)*1024 + ip*512}")
        a("s_endpgm")

    half(0)
    stats_fin()
    a("s_cmp_eq_u32 s30, 13")
    a("s_cbranch_scc1 g1_tail13")
    save = (list(a.vmq), list(a.lgq))
    half(1)
    epilogue([0, 1])
    a.label("g1_tail13")
    a.vmq, a.lgq = save
    a.wait_vm()
    a.wait_lg()
    epilogue([0])


def kernel_header(a, name):
    a.raw(f".globl {name}")
    a.raw(".p2align 8")
    a.raw(f".type {name},@function")
    a.raw(f"{name}:")


def kernel_desc(name, vgpr, sgpr=102):
    return f""".p2align 6
.amdhsa_kernel {name}
  .amdhsa_next_free_vgpr {vgpr}
  .amdhsa_next_free_sgpr {sgpr}
  .amdhsa_accum_offset {(vgpr+3)//4*4}
  .amdhsa_group_segment_fixed_size 0
  .amdhsa_kernarg_size 128
  .amdhsa_user_sgpr_count 2
  .amdhsa_user_sgpr_kernarg_segment_ptr 1
  .amdhsa_system_sgpr_workgroup_id_x 1
.end_amdhsa_kernel
"""


def fresh(a):
    a.vmq, a.lgq = [], []
    a.lastw.clear(); a.mfma_c.clear(); a.store_rd.clear()


def main():
    import roles2
    a = Asm()
    n1 = N_G1 + N_KG + N_LN + N_W2
    hdr = f"""; generated by work/gen.py
; @launch kernel=k1_kernel grid=({n1},1,1) block=(256,1,1) lds=81920
; @launch kernel=k2_kernel grid=(640,1,1) block=(256,1,1) lds=40960
; @launch kernel=k3_kernel grid=(256,1,1) block=(256,1,1) lds=81920
.amdgcn_target "amdgcn-amd-amdhsa--gfx950"
.text
"""
    kernel_header(a, "k1_kernel")
    a(f"s_cmp_lt_u32 s2, {N_G1}")
    a("s_cbranch_scc1 L_g1")
    a(f"s_sub_u32 s2, s2, {N_G1}")
    a(f"s_cmp_lt_u32 s2, {N_KG}")
    a("s_cbranch_scc1 L_kg")
    a(f"s_sub_u32 s2, s2, {N_KG}")
    a(f"s_cmp_lt_u32 s2, {N_LN}")
    a("s_cbranch_scc1 L_ln")
    a(f"s_sub_u32 s2, s2, {N_LN}")
    a(f"s_cmp_lt_u32 s2, {N_W2}")
    a("s_cbranch_scc1 L_w2")
    a("s_endpgm")
    a.label("L_ln"); fresh(a); role_ln(a)
    a.label("L_w2"); fresh(a); role_w2(a)
    a.label("L_kg"); fresh(a); roles2.role_kgen(a)
    a.label("L_g1"); fresh(a); role_g1(a)
    kernel_header(a, "k2_kernel"); fresh(a)
    a("s_cmp_lt_u32 s2, 640")
    a("s_cbranch_scc1 L_conv")
    a("s_endpgm")
    a.label("L_conv"); fresh(a); roles2.role_conv(a)
    kernel_header(a, "k3_kernel"); fresh(a)
    a("s_cmp_lt_u32 s2, 256")
    a("s_cbranch_scc1 L_g2")
    a("s_endpgm")
    a.label("L_g2"); fresh(a); roles2.role_g2(a)
    out = hdr + a.text() + '.section .rodata,"a"\n'
    out += kernel_desc("k1_kernel", 256) + kernel_desc("k2_kernel", 128) + kernel_desc("k3_kernel", 256)
    path = sys.argv[1] if len(sys.argv) > 1 else f"cdna_kernels/{NAME}.s"
    open(path, "w").write(out)
    print("wrote", path, len(out), "bytes; nops inserted:", a.nops)


if __name__ == "__main__":
    main()
```
